```python
import torch

def _softmax(x, axis=-1):
    return torch.softmax(x, dim=axis)
def _gelu(x):
    return torch.nn.functional.gelu(x, approximate="tanh")
def _silu(x):
    return torch.nn.functional.silu(x)
def _sigmoid(x):
    return torch.sigmoid(x)
def _layernorm(x, axis=-1, eps=1e-5):
    m = x.mean(dim=axis, keepdim=True)
    v = x.var(dim=axis, keepdim=True, unbiased=False)
    return (x - m) / torch.sqrt(v + eps)
def _scatter_add(tgt, idx, src, axis=0):
    return tgt.clone().index_add_(axis, idx, src)
def _segment_sum(src, seg, n):
    out = torch.zeros((n,) + src.shape[1:], dtype=src.dtype)
    return out.index_add_(0, seg, src)
def _pad(x, pw):
    flat = tuple(v for pair in reversed(pw) for v in pair)
    return torch.nn.functional.pad(x, flat)

kernel_name = 'standalone__softmax_full_bidir__sampling'

def setup_inputs():

    _w = (lambda a: (lambda t: t.to(torch.bfloat16) if t.is_floating_point() else t)(torch.as_tensor(a)))
    B, H, Sq, Skv, Dh = 8, 32, 1, 4096, 192
    return {
        "q": _w((lambda *s: torch.randn(*s, dtype=torch.bfloat16) * 0.8)(B, H, Sq, Dh)),
        "k": _w((lambda *s: torch.randn(*s, dtype=torch.bfloat16) * 0.8)(B, H, Skv, Dh)),
        "v": _w((lambda *s: torch.randn(*s, dtype=torch.bfloat16) * 0.05)(B, H, Skv, Dh)),
    }

def reference(q, k, v):
    scale = q.shape[-1] ** -0.5
    scores = torch.einsum('bhqd,bhkd->bhqk', q, k) * scale
    attn = _softmax(scores, axis=-1)
    return torch.einsum('bhqk,bhkd->bhqd', attn, v)
```

```python
import re


def regs(spec):
    if isinstance(spec, (list, tuple)):
        out = []
        for s in spec:
            out += regs(s)
        return out
    spec = str(spec).strip().lstrip('-')
    m = re.fullmatch(r'([vs])(\d+)', spec)
    if m:
        return [spec]
    m = re.fullmatch(r'([vs])\[(\d+):(\d+)\]', spec)
    if m:
        return [f'{m.group(1)}{i}' for i in range(int(m.group(2)), int(m.group(3)) + 1)]
    if spec == 'vcc':
        return ['vcc']
    if spec == 'exec':
        return ['exec']
    return []


def vr(base, n=1):
    return f'v{base}' if n == 1 else f'v[{base}:{base + n - 1}]'


def sr(base, n=1):
    return f's{base}' if n == 1 else f's[{base}:{base + n - 1}]'


TRANS = ('v_exp_f32', 'v_log_f32', 'v_rcp_f32', 'v_rsq_f32', 'v_sqrt_f32')


class Asm:
    def __init__(self):
        self.lines = []
        self.hist = []

    def raw(self, text):
        self.lines.append(text)

    def comment(self, text):
        self.lines.append(f'    ; {text}')

    def _push(self, kind, op, w, r):
        self.hist.append((kind, op, w, r))
        if len(self.hist) > 24:
            self.hist.pop(0)

    def nop(self, n):
        while n > 0:
            k = min(n, 16)
            self.lines.append(f'    s_nop {k - 1}')
            for _ in range(k):
                self._push('nop', 's_nop', [], [])
            n -= k

    def _need(self, kind, op, w, r, dpp):
        need = 0
        rs, ws = set(r), set(w)
        for dist, (pk, pop, pw, pr) in enumerate(reversed(self.hist)):
            pw_ = set(pw)
            req = 0
            pv = pk in ('valu', 'dot', 'trans')
            if pk == 'dot':
                if kind == 'dot' and op == pop:
                    srcc = set(w)
                    if (rs - srcc) & pw_:
                        req = max(req, 3)
                elif (rs | ws) & pw_:
                    req = max(req, 3)
            if pk == 'trans' and kind in ('valu', 'dot') and rs & pw_:
                req = max(req, 1)
            if pv and dpp and (rs & {x for x in pw_ if x[0] == 'v' and x != 'vcc'}):
                req = max(req, 2)
            if pv and kind == 'permlane' and (rs & pw_):
                req = max(req, 2)
            if pv and op in ('v_readfirstlane_b32', 'v_readlane_b32') and (rs & pw_):
                req = max(req, 1)
            spw = {x for x in pw_ if x[0] == 's' or x == 'vcc'}
            if pv and spw:
                if kind == 'vmem' and rs & spw:
                    req = max(req, 5)
                if kind in ('valu', 'dot', 'trans', 'permlane') and rs & spw:
                    req = max(req, 2)
                if kind == 'salu' and rs & spw:
                    req = max(req, 4)
            if pv and 'exec' in pw_:
                if dpp:
                    req = max(req, 5)
                if kind == 'permlane' or op in ('v_readfirstlane_b32', 'v_readlane_b32'):
                    req = max(req, 4)
            if pk == 'vmemstore' and kind in ('valu', 'dot', 'trans', 'permlane') and ws & set(pr):
                req = max(req, 2)
            if pk == 'salu' and 'm0' in pw_ and kind == 'vmem' and 'm0' in rs:
                req = max(req, 1)
            need = max(need, req - dist)
        return need

    def ins(self, kind, op, text, w=(), r=(), dpp=False):
        w, r = regs(list(w)), regs(list(r))
        n = self._need(kind, op, w, r, dpp)
        if n > 0:
            self.nop(n)
        self.lines.append('    ' + text)
        k = 'valu' if kind == 'permlane' else kind
        self._push(k, op, w, r)

    def label(self, name, pad=0):
        self.lines.append(f'{name}:')

    def flush(self, n=5):
        need = 0
        for dist, (pk, pop, pw, pr) in enumerate(reversed(self.hist)):
            if pk in ('valu', 'dot', 'trans') and pw:
                req = 5 if any(x[0] == 's' or x in ('vcc', 'exec') for x in pw) else 3
                need = max(need, req - dist)
            if pk == 'vmemstore':
                need = max(need, 2 - dist)
        if need > 0:
            self.nop(need)
        self.hist = []

    def salu(self, op, dst, *src, extra_w=()):
        ops = ', '.join(str(x) for x in ([dst] if dst is not None else []) + list(src))
        self.ins('salu', op, f'{op} {ops}', [dst] + list(extra_w) if dst is not None else list(extra_w), list(src))

    def valu(self, op, dst, *src, mods='', rd_dst=False, extra_r=(), extra_w=()):
        base = op
        kind = 'valu'
        if base.startswith('v_dot2'):
            kind = 'dot'
        elif base in TRANS:
            kind = 'trans'
        elif base.startswith('v_permlane'):
            kind = 'permlane'
        dpp = any(k in mods for k in ('quad_perm', 'row_', 'wave_'))
        w = [dst] + list(extra_w)
        r = list(src) + list(extra_r) + ([dst] if rd_dst else [])
        if kind == 'permlane':
            w += [src[0]]
            r += [dst]
        text = f'{op} ' + ', '.join(str(x) for x in [dst] + list(src))
        if mods:
            text += ' ' + mods
        self.ins(kind, op, text, w, r, dpp=dpp)

    def waitcnt(self, vm=None, lgkm=None):
        parts = []
        if vm is not None:
            assert 0 <= vm <= 63
            parts.append(f'vmcnt({vm})')
        if lgkm is not None:
            assert 0 <= lgkm <= 15
            parts.append(f'lgkmcnt({lgkm})')
        self.ins('wait', 's_waitcnt', 's_waitcnt ' + ' '.join(parts))

    def bufload(self, n, dst, voff, srd, soff, imm=0, flags=''):
        op = {1: 'buffer_load_dword', 2: 'buffer_load_dwordx2', 4: 'buffer_load_dwordx4'}[n]
        t = f'{op} {dst}, {voff}, {srd}, {soff} offen'
        if imm:
            t += f' offset:{imm}'
        if flags:
            t += ' ' + flags
        self.ins('vmem', op, t, [dst], [voff, srd, soff])

    def ds(self, op, a, b, offset=0):
        t = f'{op} {a}, {b}'
        if offset:
            t += f' offset:{offset}'
        if 'read' in op:
            self.ins('ds', op, t, [a], [b])
        else:
            self.ins('vmemstore', op, t, [], [a, b])

    def text(self):
        return '\n'.join(self.lines) + '\n'
```

```python
import argparse
import math
import struct
from emit import Asm, vr, sr

NAME = 'standalone__softmax_full_bidir__sampling'
HEADS, SKV, DH = 256, 4096, 192
ROWB = DH * 2
TILEB = 8 * ROWB
HEADB = SKV * ROWB


def f32bits(x):
    return struct.unpack('<I', struct.pack('<f', x))[0]


HEADER = """; Decode attention, one workgroup per (batch, head).
; @launch grid=({grid},1,1) block=({block},1,1) lds={lds}
.amdgcn_target "amdgcn-amd-amdhsa--gfx950"
.text
.globl {name}_kernel
.p2align 8
.type {name}_kernel,@function
{name}_kernel:
"""

FOOTER = """.section .rodata,"a"
.p2align 6
.amdhsa_kernel {name}_kernel
  .amdhsa_next_free_vgpr {vgpr}
  .amdhsa_next_free_sgpr {sgpr}
  .amdhsa_accum_offset {acc}
  .amdhsa_group_segment_fixed_size 0
  .amdhsa_kernarg_size 48
  .amdhsa_user_sgpr_count 2
  .amdhsa_user_sgpr_kernarg_segment_ptr 1
  .amdhsa_system_sgpr_workgroup_id_x 1
.end_amdhsa_kernel
"""


def gen(NW=16, D=4, order='inter', flags='nt', stagger=0, contig=False, stamps=False, bar=False, depeel=False, codepf=0, trace=False, thr=0, thr2=0, shard=0, every=1, fake=0, deff=0, sthr=0, slow=3, sglc='glc', srep=1, hperm=0):
    T = SKV // 8 // NW
    assert T % D == 0 and D % 2 == 0
    NIT = T // D
    if order == 'inter':
        wstride, tstride = TILEB, NW * TILEB
    elif order == 'global':
        wstride, tstride = TILEB, NW * TILEB * HEADS
    else:
        wstride, tstride = T * TILEB, TILEB
    SROW = T * 4 + 16
    SW = 8 * SROW
    OBASE = NW * SW
    MLBASE = OBASE + NW * 768
    LDS = MLBASE + NW * 8
    MODE = LDS
    if thr:
        LDS += 16

    a = Asm()
    V_TID, V_OFF, V_SC, V_M, V_L, V_T0, V_T1 = 0, 1, 2, 3, 4, 5, 6
    V_A0, V_A1 = 8, 9
    V_B0, V_B1 = 10, 11
    V_S = 12
    nS = max(D, 4)
    V_PL = V_S + nS
    V_PH = V_PL + D
    V_ACC = (V_PH + D + 3) // 4 * 4
    V_Q = V_ACC
    V_RING = V_ACC + 24
    NV = V_RING + 12 * D
    V_CL, V_MD, V_MA = NV, NV + 1, NV + 2
    if thr or sthr:
        NV += 3
    assert NV <= min(256, 512 // max(1, NW // 4)), (NV, NW)

    S_Q, S_K, S_V, S_O = 4, 6, 8, 10
    SRD_K, SRD_V, SRD_Q, SRD_O = 12, 16, 20, 24
    S_W, S_CNT, S_OFF, S_C, S_T0, S_T1, S_END, S_T2 = 28, 29, 30, 31, 32, 33, 34, 35
    NS = 96 if sthr else 64
    S_ST = 40

    def stamp(i):
        if stamps:
            a.raw(f'    s_memrealtime s[{S_ST + 2 * i}:{S_ST + 2 * i + 1}]')

    def stamp_store():
        if not stamps:
            return
        a.raw('    s_load_dwordx2 s[52:53], s[0:1], 40')
        a.raw('    s_getreg_b32 s58, hwreg(HW_REG_XCC_ID)')
        a.raw('    s_getreg_b32 s59, hwreg(HW_REG_HW_ID)')
        a.raw('    s_waitcnt lgkmcnt(0)')
        a.raw('    s_and_b32 s53, s53, 0xffff')
        a.raw('    s_mov_b32 s54, 0x100000')
        a.raw('    s_mov_b32 s55, 0x20000')
        a.raw(f'    s_mul_i32 s56, s2, {NW}')
        a.raw(f'    s_add_u32 s56, s56, s{S_W}')
        a.raw('    s_lshl_b32 s56, s56, 5')
        a.raw('    v_mov_b32 v60, 0')
        for i in range(6):
            a.raw(f'    v_mov_b32 v61, s{S_ST + 2 * i}')
            a.raw(f'    s_nop 0')
            a.raw(f'    buffer_store_dword v61, v60, s[52:55], s56 offen offset:{4 * i}')
            a.raw(f'    s_nop 1')
        a.raw(f'    v_mov_b32 v61, s58')
        a.raw(f'    v_mov_b32 v62, s59')
        a.raw(f'    s_nop 0')
        a.raw(f'    buffer_store_dword v61, v60, s[52:55], s56 offen offset:24')
        a.raw(f'    buffer_store_dword v62, v60, s[52:55], s56 offen offset:28')

    S_TH, S_MD, S_DBG, SRD_DBG, S_CO, S_IT = 45, 46, 48, 60, 47, 44

    def checkpoint(report):
        if fake:
            nl = ntr[0] = ntr[0] + 1
            a.salu('s_cmp_le_i32', None, sr(S_MD), 0)
            a.flush()
            a.raw(f'    s_cbranch_scc1 L_nd{nl}')
            a.waitcnt(vm=0)
            a.label(f'L_nd{nl}')
            return
        if not thr:
            return
        nl = ntr[0] = ntr[0] + 1
        a.salu('s_add_u32', sr(S_IT), sr(S_IT), 1)
        a.salu('s_and_b32', sr(S_MD), sr(S_IT), every - 1)
        a.salu('s_or_b32', sr(S_MD), sr(S_MD), sr(S_W))
        a.salu('s_cmp_lg_u32', None, sr(S_MD), 0)
        a.flush()
        a.raw(f'    s_cbranch_scc1 L_cp{nl}')
        a.valu('v_readfirstlane_b32', sr(S_MD), vr(V_CL))
        if report:
            a.valu('v_mov_b32', vr(V_CL), 1)
            a.salu('s_mov_b64', 'exec', 1)
            a.ins('vmem', 'buffer_atomic_add', f'buffer_atomic_add {vr(V_CL)}, off, {sr(SRD_DBG, 4)}, {sr(S_CO)} sc0',
                  [vr(V_CL)], [vr(V_CL), sr(SRD_DBG, 4), sr(S_CO)])
            a.salu('s_mov_b64', 'exec', -1)
        a.salu('s_sub_i32', sr(S_MD), sr(S_TH), sr(S_MD))
        a.valu('v_mov_b32', vr(V_MD), sr(S_MD))
        a.ds('ds_write_b32', vr(V_MA), vr(V_MD))
        a.salu('s_add_u32', sr(S_TH), sr(S_TH), (128 if shard else 256))
        a.flush()
        a.label(f'L_cp{nl}')
        a.ds('ds_read_b32', vr(V_MD), vr(V_MA))
        a.waitcnt(lgkm=0)
        a.valu('v_readfirstlane_b32', sr(S_MD), vr(V_MD))
        a.salu('s_cmp_le_i32', None, sr(S_MD), 0)
        a.flush()
        a.raw(f'    s_cbranch_scc1 L_nd{nl}')
        a.waitcnt(vm=0)
        a.label(f'L_nd{nl}')

    S_PG = 64

    def prog_issue():
        if sthr:
            a.raw(f'    s_load_dwordx16 s[{S_PG}:{S_PG + 15}], s[{S_DBG}:{S_DBG + 1}], 0 {sglc}')

    def prog_point(issue=True):
        if not sthr:
            return
        nl = ntr[0] = ntr[0] + 1
        a.salu('s_add_u32', sr(S_IT), sr(S_IT), 1)
        if srep:
            a.salu('s_cmp_lg_u32', None, sr(S_CO), 0)
            a.flush()
            a.raw(f'    s_cbranch_scc1 L_rp{nl}')
            a.valu('v_mov_b32', vr(V_CL), sr(S_IT))
            a.salu('s_mov_b64', 'exec', 1)
            a.ins('vmemstore', 'buffer_store_dword', f'buffer_store_dword {vr(V_CL)}, off, {sr(SRD_DBG, 4)}, {sr(S_TH)} sc0 sc1',
                  [], [vr(V_CL), sr(SRD_DBG, 4), sr(S_TH)])
            a.salu('s_mov_b64', 'exec', -1)
            a.flush()
            a.label(f'L_rp{nl}')
        a.waitcnt(lgkm=0)
        for i in range(8):
            a.salu('s_add_u32', sr(S_PG + i), sr(S_PG + i), sr(S_PG + i + 8))
        for i in range(4):
            a.salu('s_add_u32', sr(S_PG + i), sr(S_PG + i), sr(S_PG + i + 4))
        a.salu('s_add_u32', sr(S_PG), sr(S_PG), sr(S_PG + 2))
        a.salu('s_add_u32', sr(S_PG + 1), sr(S_PG + 1), sr(S_PG + 3))
        a.salu('s_add_u32', sr(S_PG), sr(S_PG), sr(S_PG + 1))
        a.salu('s_lshl_b32', sr(S_MD), sr(S_IT), 4)
        a.salu('s_sub_i32', sr(S_MD), sr(S_MD), sr(S_PG))
        if trace:
            a.raw(f'    s_mov_b32 m0, s{S_IT}')
            a.raw('    s_nop 3')
            a.raw(f'    v_writelane_b32 v{V_MD}, s{S_MD}, m0')
        a.salu('s_sub_i32', sr(S_MD), sr(S_MD), sthr)
        if issue:
            prog_issue()

    def mid_drain():
        if not thr2 and fake < 2:
            return
        nl = ntr[0] = ntr[0] + 1
        a.salu('s_cmp_le_i32', None, sr(S_MD), thr2 - thr if thr2 else 1)
        a.flush()
        a.raw(f'    s_cbranch_scc1 L_nd{nl}')
        a.waitcnt(vm=0)
        a.label(f'L_nd{nl}')

    V_TR = 7
    ntr = [0]

    def trace_point():
        if trace:
            a.raw('    s_memrealtime s[40:41]')
            a.raw('    s_waitcnt lgkmcnt(0)')
            a.raw('    s_mov_b32 m0, s42')
            a.raw('    s_nop 3')
            a.raw(f'    v_writelane_b32 v{V_TR}, s40, m0')
            a.raw('    s_add_u32 s42, s42, 1')

    def trace_store():
        if not trace:
            return
        a.raw('    s_load_dwordx2 s[52:53], s[0:1], 40')
        a.raw('    s_getreg_b32 s58, hwreg(HW_REG_XCC_ID)')
        a.raw('    s_waitcnt lgkmcnt(0)')
        a.raw('    s_and_b32 s53, s53, 0xffff')
        a.raw('    s_mov_b32 s54, 0x1000000')
        a.raw('    s_mov_b32 s55, 0x20000')
        a.raw(f'    v_writelane_b32 v{V_TR}, s58, 63')
        a.raw(f'    s_mul_i32 s56, s2, {NW}')
        a.raw(f'    s_add_u32 s56, s56, s{S_W}')
        a.raw('    s_lshl_b32 s56, s56, 8')
        a.raw('    v_mbcnt_lo_u32_b32 v60, -1, 0')
        a.raw('    v_mbcnt_hi_u32_b32 v60, -1, v60')
        a.raw('    v_lshlrev_b32 v60, 2, v60')
        a.raw('    s_nop 1')
        a.raw(f'    buffer_store_dword v{V_TR}, v60, s[52:55], s56 offen')
        if sthr:
            a.raw('    s_add_u32 s56, s56, 0x800000')
            a.raw(f'    buffer_store_dword v{V_MD}, v60, s[52:55], s56 offen')

    def ring(j, k=0, n=12):
        return V_RING + 12 * j + k

    def load_tile(j, srd, limit=True):
        if deff and limit:
            a.waitcnt(vm=3 * (deff - 1))
        if sthr and limit:
            nl = ntr[0] = ntr[0] + 1
            a.salu('s_cmp_le_i32', None, sr(S_MD), 0)
            a.flush()
            a.raw(f'    s_cbranch_scc1 L_fs{nl}')
            a.waitcnt(vm=3 * (slow - 1))
            a.label(f'L_fs{nl}')
        for k in range(3):
            a.bufload(4, vr(ring(j, 4 * k), 4), vr(V_OFF), sr(srd, 4), sr(S_OFF), imm=(1024 if contig else 128) * k, flags=flags)

    def next_off():
        a.salu('s_add_u32', sr(S_OFF), sr(S_OFF), tstride)
        if stagger:
            a.salu('s_cmp_ge_u32', None, sr(S_OFF), sr(S_END))
            a.salu('s_cselect_b32', sr(S_T2), T * tstride, 0)
            a.salu('s_sub_u32', sr(S_OFF), sr(S_OFF), sr(S_T2))

    a.salu('s_cmp_ge_u32', None, 's2', HEADS)
    a.raw('    s_cbranch_scc1 L_end')
    if hperm == 1:
        a.salu('s_and_b32', 's3', 's2', 7)
        a.salu('s_lshl_b32', 's3', 's3', 5)
        a.salu('s_lshr_b32', 's2', 's2', 3)
        a.salu('s_or_b32', 's2', 's2', 's3')
    elif hperm == 2:
        a.salu('s_and_b32', 's3', 's2', 7)
        a.salu('s_lshl_b32', 's3', 's3', 1)
        a.salu('s_bfe_u32', 's59', 's2', 0x10003)
        a.salu('s_or_b32', 's3', 's3', 's59')
        a.salu('s_and_b32', 's2', 's2', 0xf0)
        a.salu('s_or_b32', 's2', 's2', 's3')
    elif hperm == 3:
        a.salu('s_lshr_b32', 's3', 's2', 3)
        a.salu('s_add_u32', 's3', 's3', 's2')
        a.salu('s_and_b32', 's3', 's3', 7)
        a.salu('s_and_b32', 's2', 's2', 0xf8)
        a.salu('s_or_b32', 's2', 's2', 's3')
    elif hperm == 4:
        a.salu('s_lshr_b32', 's3', 's2', 3)
        a.salu('s_lshr_b32', 's59', 's2', 6)
        a.salu('s_xor_b32', 's3', 's3', 's59')
        a.salu('s_and_b32', 's3', 's3', 7)
        a.salu('s_xor_b32', 's2', 's2', 's3')
    elif hperm == 5:
        a.salu('s_lshr_b32', 's3', 's2', 3)
        a.salu('s_mul_i32', 's3', 's3', 3)
        a.salu('s_add_u32', 's3', 's3', 's2')
        a.salu('s_and_b32', 's3', 's3', 7)
        a.salu('s_and_b32', 's2', 's2', 0xf8)
        a.salu('s_or_b32', 's2', 's2', 's3')
    elif hperm == 6:
        a.salu('s_and_b32', 's3', 's2', 7)
        a.salu('s_lshl_b32', 's3', 's3', 2)
        a.salu('s_bfe_u32', 's59', 's2', 0x20003)
        a.salu('s_or_b32', 's3', 's3', 's59')
        a.salu('s_and_b32', 's2', 's2', 0xe0)
        a.salu('s_or_b32', 's2', 's2', 's3')
    stamp(0)
    if trace:
        a.raw('    s_mov_b32 s42, 0')
        a.raw(f'    v_mov_b32 v{V_TR}, 0')
        trace_point()
    a.raw(f'    s_load_dwordx4 s[{S_Q}:{S_Q + 3}], s[0:1], 0')
    a.raw(f'    s_load_dwordx4 s[{S_V}:{S_V + 3}], s[0:1], 16')
    if thr or sthr:
        a.raw(f'    s_load_dwordx2 s[{S_DBG}:{S_DBG + 1}], s[0:1], 32')
    a.valu('v_lshrrev_b32', vr(V_T0), 6, vr(V_TID))
    a.valu('v_and_b32', vr(V_TID), 63, vr(V_TID))
    if codepf:
        a.raw('    s_getpc_b64 s[60:61]')
        a.raw('L_pc:')
        a.valu('v_lshlrev_b32', vr(V_A0), 7, vr(V_TID))
        a.valu('v_min_u32', vr(V_A0), 'L_end-L_pc', vr(V_A0))
        a.valu('v_mov_b32', vr(V_A1), 's61')
        a.valu('v_add_co_u32', vr(V_A0), 'vcc', 's60', vr(V_A0), extra_w=['vcc'])
        a.valu('v_addc_co_u32', vr(V_A1), 'vcc', 0, vr(V_A1), 'vcc', extra_w=['vcc'])
        a.raw(f'    global_load_dword {vr(V_B0)}, {vr(V_A0, 2)}, off')
    a.valu('v_readfirstlane_b32', sr(S_W), vr(V_T0))
    a.valu('v_lshrrev_b32', vr(V_T0), 3, vr(V_TID))
    a.valu('v_and_b32', vr(V_T1), 7, vr(V_TID))
    a.valu('v_lshlrev_b32', vr(V_T1), 4, vr(V_T1))
    a.valu('v_mul_u32_u24', vr(V_OFF), ROWB, vr(V_T0))
    a.valu('v_add_u32', vr(V_OFF), vr(V_OFF), vr(V_T1))
    a.valu('v_mul_u32_u24', vr(V_SC), SROW, vr(V_T0))
    if contig:
        a.valu('v_lshlrev_b32', vr(V_OFF), 4, vr(V_TID))
    a.salu('s_mul_i32', sr(S_T0), 's2', HEADB if order != 'global' else NW * TILEB)
    a.salu('s_mul_i32', sr(S_T1), 's2', ROWB)
    a.salu('s_mul_i32', sr(S_OFF), sr(S_W), wstride)
    if stagger:
        a.salu('s_add_u32', sr(S_END), sr(S_OFF), T * tstride)
        a.salu('s_mul_i32', sr(S_CNT), 's2', stagger)
        a.salu('s_and_b32', sr(S_CNT), sr(S_CNT), T - 1)
        a.salu('s_mul_i32', sr(S_CNT), sr(S_CNT), tstride)
        a.salu('s_add_u32', sr(S_OFF), sr(S_OFF), sr(S_CNT))
    a.waitcnt(lgkm=0)
    a.salu('s_add_u32', sr(SRD_Q), sr(S_Q), sr(S_T1))
    a.salu('s_addc_u32', sr(SRD_Q + 1), sr(S_Q + 1), 0)
    a.salu('s_and_b32', sr(SRD_Q + 1), sr(SRD_Q + 1), 0xffff)
    a.salu('s_mov_b32', sr(SRD_Q + 2), ROWB)
    a.salu('s_mov_b32', sr(SRD_Q + 3), 0x20000)
    a.salu('s_add_u32', sr(SRD_K), sr(S_K), sr(S_T0))
    a.salu('s_addc_u32', sr(SRD_K + 1), sr(S_K + 1), 0)
    a.salu('s_and_b32', sr(SRD_K + 1), sr(SRD_K + 1), 0xffff)
    a.salu('s_mov_b32', sr(SRD_K + 2), HEADB if order != 'global' else HEADS * HEADB - HEADS * NW * TILEB + NW * TILEB)
    a.salu('s_mov_b32', sr(SRD_K + 3), 0x20000)
    for k in range(3):
        a.bufload(4, vr(V_Q + 4 * k, 4), vr(V_T1), sr(SRD_Q, 4), 0, imm=128 * k)
    for j in range(D):
        load_tile(j, SRD_K, j >= deff and not sthr)
        next_off()
    a.salu('s_add_u32', sr(SRD_V), sr(S_V), sr(S_T0))
    a.salu('s_addc_u32', sr(SRD_V + 1), sr(S_V + 1), 0)
    a.salu('s_and_b32', sr(SRD_V + 1), sr(SRD_V + 1), 0xffff)
    a.salu('s_mov_b32', sr(SRD_V + 2), HEADB if order != 'global' else HEADS * HEADB - HEADS * NW * TILEB + NW * TILEB)
    a.salu('s_mov_b32', sr(SRD_V + 3), 0x20000)
    a.salu('s_add_u32', sr(SRD_O), sr(S_O), sr(S_T1))
    a.salu('s_addc_u32', sr(SRD_O + 1), sr(S_O + 1), 0)
    a.salu('s_and_b32', sr(SRD_O + 1), sr(SRD_O + 1), 0xffff)
    a.salu('s_mov_b32', sr(SRD_O + 2), ROWB)
    a.salu('s_mov_b32', sr(SRD_O + 3), 0x20000)
    a.salu('s_mov_b32', sr(S_C), hex(f32bits(DH ** -0.5 * math.log2(math.e))))
    a.salu('s_mul_i32', sr(S_T0), sr(S_W), SW)
    a.valu('v_add_u32', vr(V_SC), sr(S_T0), vr(V_SC))
    a.valu('v_mov_b32', vr(V_M), hex(f32bits(-3.0e38)))
    a.valu('v_mov_b32', vr(V_L), 0)
    if fake:
        a.raw(f'    s_getreg_b32 s{S_MD}, hwreg(HW_REG_XCC_ID)')
        a.salu('s_and_b32', sr(S_MD), sr(S_MD), 15)
        a.salu('s_cmp_lt_u32', None, sr(S_MD), 4)
        a.salu('s_cselect_b32', sr(S_MD), fake, 0)
    if sthr:
        a.salu('s_mov_b32', sr(SRD_DBG), sr(S_DBG))
        a.salu('s_and_b32', sr(SRD_DBG + 1), sr(S_DBG + 1), 0xffff)
        a.salu('s_mov_b32', sr(SRD_DBG + 2), 64)
        a.salu('s_mov_b32', sr(SRD_DBG + 3), 0x20000)
        a.salu('s_mov_b32', sr(S_MD), 0)
        a.salu('s_mov_b32', sr(S_IT), 0)
        a.valu('v_mov_b32', vr(V_MD), 0)
        a.salu('s_lshl_b32', sr(S_TH), 's2', 2)
        a.salu('s_lshr_b32', sr(S_CO), 's2', 4)
        a.salu('s_or_b32', sr(S_CO), sr(S_CO), sr(S_W))
        prog_issue()
    if thr:
        a.salu('s_mov_b32', sr(SRD_DBG), sr(S_DBG))
        a.salu('s_and_b32', sr(SRD_DBG + 1), sr(S_DBG + 1), 0xffff)
        a.salu('s_mov_b32', sr(SRD_DBG + 2), 256)
        a.salu('s_mov_b32', sr(SRD_DBG + 3), 0x20000)
        a.valu('v_mov_b32', vr(V_CL), 0x7fffff)
        a.valu('v_mov_b32', vr(V_MD), 0)
        a.valu('v_mov_b32', vr(V_MA), MODE)
        a.salu('s_mov_b32', sr(S_MD), 0)
        a.salu('s_mov_b32', sr(S_IT), 0)
        a.salu('s_mov_b32', sr(S_TH), -thr)
        if shard:
            a.salu('s_lshr_b32', sr(S_CO), 's2', 3)
            a.salu('s_and_b32', sr(S_CO), sr(S_CO), 1)
            a.salu('s_lshl_b32', sr(S_CO), sr(S_CO), 7)
        else:
            a.salu('s_mov_b32', sr(S_CO), 0)
        a.ds('ds_write_b32', vr(V_MA), vr(V_MD))
        a.waitcnt(lgkm=0)
        a.raw('    s_barrier')

    if stamps:
        a.waitcnt(vm=3 * (D - 1))
        stamp(1)
    def k_dots(j):
        a0, a1 = (V_A0, V_A1) if j % 2 == 0 else (V_B0, V_B1)
        a.waitcnt(vm=3 * (D - 1))
        a.valu('v_mov_b32', vr(a0), 0)
        a.valu('v_mov_b32', vr(a1), 0)
        for i in range(12):
            a.valu('v_dot2c_f32_bf16', vr(a0 if i % 2 == 0 else a1), vr(ring(j, i)), vr(V_Q + i), rd_dst=True)

    def k_reduce(j):
        a0, a1 = (V_A0, V_A1) if j % 2 == 0 else (V_B0, V_B1)
        s = V_S + j
        a.valu('v_add_f32', vr(s), vr(a0), vr(a1))
        a.valu('v_add_f32_dpp', vr(s), vr(s), vr(s), mods='quad_perm:[1,0,3,2] row_mask:0xf bank_mask:0xf')
        a.valu('v_add_f32_dpp', vr(s), vr(s), vr(s), mods='quad_perm:[2,3,0,1] row_mask:0xf bank_mask:0xf')
        a.valu('v_add_f32_dpp', vr(s), vr(s), vr(s), mods='row_half_mirror row_mask:0xf bank_mask:0xf')
        a.valu('v_max_f32', vr(V_M), vr(V_M), vr(s))

    def score_store():
        if D % 4 == 0:
            for g in range(D // 4):
                a.ds('ds_write_b128', vr(V_SC), vr(V_S + 4 * g, 4), offset=16 * g)
        else:
            for g in range(D // 2):
                a.ds('ds_write_b64', vr(V_SC), vr(V_S + 2 * g, 2), offset=8 * g)
        a.valu('v_add_u32', vr(V_SC), 4 * D, vr(V_SC))

    def k_body(srd, issue=True):
        for j in range(D):
            if j == D // 2:
                mid_drain()
            k_dots(j)
            load_tile(j, srd)
            next_off()
            if j > 0:
                k_reduce(j - 1)
        k_reduce(D - 1)
        score_store()
        checkpoint(True)
        trace_point()
        prog_point(issue)

    if depeel:
        assert not stagger and NIT > 1
        a.salu('s_mul_i32', sr(S_T1), sr(S_W), wstride)
        a.salu('s_mov_b32', sr(S_CNT), NIT)
        a.flush()
        a.label('L_k')
        k_body(SRD_K)
        if bar:
            a.raw('    s_barrier')
        a.salu('s_sub_u32', sr(S_CNT), sr(S_CNT), 1)
        a.salu('s_cmp_eq_u32', None, sr(S_CNT), 1)
        a.salu('s_cselect_b32', sr(SRD_K), sr(SRD_V), sr(SRD_K))
        a.salu('s_cselect_b32', sr(SRD_K + 1), sr(SRD_V + 1), sr(SRD_K + 1))
        a.salu('s_cselect_b32', sr(S_OFF), sr(S_T1), sr(S_OFF))
        a.salu('s_cmp_lg_u32', None, sr(S_CNT), 0)
        a.flush()
        a.raw('    s_cbranch_scc1 L_k')
    else:
        if NIT > 1:
            a.salu('s_mov_b32', sr(S_CNT), NIT - 1)
            a.flush()
            a.label('L_k')
            k_body(SRD_K)
            if bar:
                a.raw('    s_barrier')
            a.salu('s_sub_u32', sr(S_CNT), sr(S_CNT), 1)
            a.salu('s_cmp_lg_u32', None, sr(S_CNT), 0)
            a.flush()
            a.raw('    s_cbranch_scc1 L_k')
        a.salu('s_mul_i32', sr(S_OFF), sr(S_W), wstride)
        if stagger:
            a.salu('s_mul_i32', sr(S_CNT), 's2', stagger)
            a.salu('s_and_b32', sr(S_CNT), sr(S_CNT), T - 1)
            a.salu('s_mul_i32', sr(S_CNT), sr(S_CNT), tstride)
            a.salu('s_add_u32', sr(S_OFF), sr(S_OFF), sr(S_CNT))
        k_body(SRD_V, False)

    stamp(2)
    def allreduce(x, op):
        a.valu(op + '_dpp', vr(x), vr(x), vr(x), mods='row_ror:8 row_mask:0xf bank_mask:0xf')
        a.valu('v_mov_b32', vr(V_T0), vr(x))
        a.valu('v_permlane16_swap_b32', vr(x), vr(V_T0))
        a.valu(op, vr(x), vr(x), vr(V_T0))
        a.valu('v_mov_b32', vr(V_T0), vr(x))
        a.valu('v_permlane32_swap_b32', vr(x), vr(V_T0))
        a.valu(op, vr(x), vr(x), vr(V_T0))

    allreduce(V_M, 'v_max_f32')
    a.valu('v_mul_f32', vr(V_M), sr(S_C), vr(V_M))
    a.valu('v_subrev_u32', vr(V_SC), 4 * T, vr(V_SC))
    for i in range(24):
        a.valu('v_mov_b32', vr(V_ACC + i), 0)

    def score_load():
        if D % 4 == 0:
            for g in range(D // 4):
                a.ds('ds_read_b128', vr(V_S + 4 * g, 4), vr(V_SC), offset=16 * g)
        else:
            for g in range(D // 2):
                a.ds('ds_read_b64', vr(V_S + 2 * g, 2), vr(V_SC), offset=8 * g)
        a.valu('v_add_u32', vr(V_SC), 4 * D, vr(V_SC))

    def v_probs():
        if not sthr:
            a.waitcnt(lgkm=0)
        for j in range(D):
            a.valu('v_fma_f32', vr(V_S + j), vr(V_S + j), sr(S_C), '-' + vr(V_M))
        for j in range(D):
            a.valu('v_exp_f32', vr(V_S + j), vr(V_S + j))
        for j in range(D):
            a.valu('v_cvt_pk_bf16_f32', vr(V_PL + j), vr(V_S + j), 0)
            a.valu('v_cvt_pk_bf16_f32', vr(V_PH + j), 0, vr(V_S + j))
        for j in range(D):
            a.valu('v_add_f32', vr(V_L), vr(V_L), vr(V_PH + j))

    def v_body(last):
        v_probs()
        if not last:
            score_load()
        for j in range(D):
            if j == D // 2 and not last:
                mid_drain()
            a.waitcnt(vm=3 * (D - 1) if not last else 3 * (D - 1 - j))
            for i in range(12):
                a.valu('v_dot2c_f32_bf16', vr(V_ACC + 2 * i), vr(ring(j, i)), vr(V_PL + j), rd_dst=True)
                a.valu('v_dot2c_f32_bf16', vr(V_ACC + 2 * i + 1), vr(ring(j, i)), vr(V_PH + j), rd_dst=True)
            if not last:
                load_tile(j, SRD_V)
                next_off()
        if not last:
            checkpoint(True)
        trace_point()
        if not last:
            prog_point()

    a.waitcnt(lgkm=0)
    score_load()
    if sthr:
        a.waitcnt(lgkm=0)
        prog_issue()
    if depeel:
        a.salu('s_mov_b32', sr(S_CNT), NIT)
        a.flush()
        a.label('L_v')
        v_body(False)
        if bar:
            a.raw('    s_barrier')
        a.salu('s_sub_u32', sr(S_CNT), sr(S_CNT), 1)
        a.salu('s_cmp_eq_u32', None, sr(S_CNT), 1)
        a.salu('s_cselect_b32', sr(SRD_V + 2), 0, sr(SRD_V + 2))
        a.salu('s_cmp_lg_u32', None, sr(S_CNT), 0)
        a.flush()
        a.raw('    s_cbranch_scc1 L_v')
        a.waitcnt(vm=0, lgkm=0)
    else:
        if NIT > 1:
            a.salu('s_mov_b32', sr(S_CNT), NIT - 1)
            a.flush()
            a.label('L_v')
            v_body(False)
            if bar:
                a.raw('    s_barrier')
            a.salu('s_sub_u32', sr(S_CNT), sr(S_CNT), 1)
            a.salu('s_cmp_lg_u32', None, sr(S_CNT), 0)
            a.flush()
            a.raw('    s_cbranch_scc1 L_v')
        v_body(True)

    stamp(3)
    for i in range(12):
        a.valu('v_permlane32_swap_b32', vr(V_ACC + i), vr(V_ACC + i + 12))
    for i in range(12):
        a.valu('v_add_f32', vr(V_ACC + i), vr(V_ACC + i), vr(V_ACC + i + 12))
    for i in range(6):
        a.valu('v_permlane16_swap_b32', vr(V_ACC + i), vr(V_ACC + i + 6))
    for i in range(6):
        a.valu('v_add_f32', vr(V_ACC + i), vr(V_ACC + i), vr(V_ACC + i + 6))
    for i in range(6):
        a.valu('v_add_f32_dpp', vr(V_ACC + i), vr(V_ACC + i), vr(V_ACC + i), mods='row_ror:8 row_mask:0xf bank_mask:0xf')
    allreduce(V_L, 'v_add_f32')
    a.valu('v_bfe_u32', vr(V_T0), vr(V_TID), 4, 1)
    a.valu('v_mul_u32_u24', vr(V_T0), 6 * 32, vr(V_T0))
    a.valu('v_lshrrev_b32', vr(V_T1), 5, vr(V_TID))
    a.valu('v_mul_u32_u24', vr(V_T1), 12 * 32, vr(V_T1))
    a.valu('v_add_u32', vr(V_T0), vr(V_T0), vr(V_T1))
    a.valu('v_and_b32', vr(V_T1), 7, vr(V_TID))
    a.valu('v_lshlrev_b32', vr(V_T1), 2, vr(V_T1))
    a.valu('v_add_u32', vr(V_T0), vr(V_T0), vr(V_T1))
    a.salu('s_mul_i32', sr(S_T0), sr(S_W), 768)
    a.salu('s_add_u32', sr(S_T0), sr(S_T0), OBASE)
    a.valu('v_add_u32', vr(V_T0), sr(S_T0), vr(V_T0))
    for k in range(6):
        a.ds('ds_write_b32', vr(V_T0), vr(V_ACC + k), offset=32 * k)
    a.salu('s_lshl_b32', sr(S_T0), sr(S_W), 3)
    a.salu('s_add_u32', sr(S_T0), sr(S_T0), MLBASE)
    a.valu('v_mov_b32', vr(V_T1), sr(S_T0))
    a.valu('v_mov_b32', vr(V_A0), vr(V_M))
    a.valu('v_mov_b32', vr(V_A1), vr(V_L))
    a.ds('ds_write_b64', vr(V_T1), vr(V_A0, 2))
    a.waitcnt(lgkm=0)
    a.raw('    s_barrier')
    stamp(4)
    a.salu('s_cmp_ge_u32', None, sr(S_W), 3)
    a.raw('    s_cbranch_scc1 L_fin')

    R_ML = V_RING
    R_O = V_RING + 2 * NW
    assert R_O + NW <= NV or True
    NV = max(NV, R_O + NW)
    a.salu('s_lshl_b32', sr(S_T0), sr(S_W), 6)
    a.valu('v_add_u32', vr(V_TID), sr(S_T0), vr(V_TID))
    a.valu('v_lshrrev_b32', vr(V_T0), 6, vr(V_TID))
    a.valu('v_lshlrev_b32', vr(V_T0), 3, vr(V_T0))
    a.valu('v_and_b32', vr(V_T1), 7, vr(V_TID))
    a.valu('v_add_u32', vr(V_T0), vr(V_T0), vr(V_T1))
    a.valu('v_lshlrev_b32', vr(V_T0), 3, vr(V_T0))
    a.valu('v_bfe_u32', vr(V_T1), vr(V_TID), 3, 3)
    a.valu('v_add_u32', vr(V_T0), vr(V_T0), vr(V_T1))
    a.valu('v_lshlrev_b32', vr(V_T0), 2, vr(V_T0))
    a.valu('v_add_u32', vr(V_T0), OBASE, vr(V_T0))
    a.valu('v_mov_b32', vr(V_T1), MLBASE)
    for g in range(NW // 2):
        a.ds('ds_read_b128', vr(R_ML + 4 * g, 4), vr(V_T1), offset=16 * g)
    for w in range(NW):
        a.ds('ds_read_b32', vr(R_O + w), vr(V_T0), offset=768 * w)
    a.waitcnt(lgkm=0)
    a.valu('v_mov_b32', vr(V_M), vr(R_ML))
    for w in range(1, NW):
        a.valu('v_max_f32', vr(V_M), vr(V_M), vr(R_ML + 2 * w))
    for w in range(NW):
        a.valu('v_sub_f32', vr(R_ML + 2 * w), vr(R_ML + 2 * w), vr(V_M))
    for w in range(NW):
        a.valu('v_exp_f32', vr(R_ML + 2 * w), vr(R_ML + 2 * w))
    a.valu('v_mul_f32', vr(V_L), vr(R_ML), vr(R_ML + 1))
    a.valu('v_mul_f32', vr(V_A0), vr(R_ML), vr(R_O))
    for w in range(1, NW):
        a.valu('v_fmac_f32', vr(V_L), vr(R_ML + 2 * w), vr(R_ML + 2 * w + 1), rd_dst=True)
        a.valu('v_fmac_f32', vr(V_A0), vr(R_ML + 2 * w), vr(R_O + w), rd_dst=True)
    a.valu('v_rcp_f32', vr(V_L), vr(V_L))
    a.valu('v_mul_f32', vr(V_A0), vr(V_A0), vr(V_L))
    a.valu('v_cvt_pk_bf16_f32', vr(V_A0), vr(V_A0), vr(V_A0))
    a.valu('v_lshlrev_b32', vr(V_T0), 1, vr(V_TID))
    a.ins('vmemstore', 'buffer_store_short', f'buffer_store_short {vr(V_A0)}, {vr(V_T0)}, {sr(SRD_O, 4)}, 0 offen',
          [], [vr(V_A0), vr(V_T0), sr(SRD_O, 4)])
    a.raw('L_fin:')
    stamp(5)
    stamp_store()
    trace_point()
    trace_store()
    a.raw('L_end:')
    a.raw('    s_endpgm')

    nv = (NV + 7) // 8 * 8
    return (HEADER.format(grid=HEADS, block=NW * 64, lds=LDS, name=NAME) + a.text()
            + FOOTER.format(name=NAME, vgpr=nv, sgpr=NS, acc=(nv + 3) // 4 * 4))


if __name__ == '__main__':
    p = argparse.ArgumentParser()
    p.add_argument('-o', default='/dev/stdout')
    p.add_argument('--nw', type=int, default=16)
    p.add_argument('--d', type=int, default=4)
    p.add_argument('--order', default='inter')
    p.add_argument('--flags', default='nt')
    p.add_argument('--stagger', type=int, default=0)
    p.add_argument('--contig', action='store_true')
    p.add_argument('--stamps', action='store_true')
    p.add_argument('--bar', action='store_true')
    p.add_argument('--depeel', action='store_true')
    p.add_argument('--codepf', type=int, default=0)
    p.add_argument('--trace', action='store_true')
    p.add_argument('--thr', type=int, default=0)
    p.add_argument('--thr2', type=int, default=0)
    p.add_argument('--shard', type=int, default=0)
    p.add_argument('--every', type=int, default=1)
    p.add_argument('--fake', type=int, default=0)
    p.add_argument('--deff', type=int, default=0)
    p.add_argument('--sthr', type=int, default=0)
    p.add_argument('--slow', type=int, default=3)
    p.add_argument('--sglc', default='glc')
    p.add_argument('--srep', type=int, default=1)
    p.add_argument('--hperm', type=int, default=0)
    g = p.parse_args()
    open(g.o, 'w').write(gen(g.nw, g.d, g.order, g.flags, g.stagger, g.contig, g.stamps, g.bar, g.depeel, g.codepf, g.trace, g.thr, g.thr2, g.shard, g.every, g.fake, g.deff, g.sthr, g.slow, g.sglc, g.srep, g.hperm))
```
